```python
import torch

def _softmax(x, axis=-1):
    return torch.softmax(x, dim=axis)
def _gelu(x):
    return torch.nn.functional.gelu(x, approximate="tanh")
def _silu(x):
    return torch.nn.functional.silu(x)
def _sigmoid(x):
    return torch.sigmoid(x)
def _layernorm(x, axis=-1, eps=1e-5):
    m = x.mean(dim=axis, keepdim=True)
    v = x.var(dim=axis, keepdim=True, unbiased=False)
    return (x - m) / torch.sqrt(v + eps)
def _scatter_add(tgt, idx, src, axis=0):
    return tgt.clone().index_add_(axis, idx, src)
def _segment_sum(src, seg, n):
    out = torch.zeros((n,) + src.shape[1:], dtype=src.dtype)
    return out.index_add_(0, seg, src)
def _pad(x, pw):
    flat = tuple(v for pair in reversed(pw) for v in pair)
    return torch.nn.functional.pad(x, flat)

kernel_name = 'gated_mix__sliding_block_cached__dense_activation_mish__decode'

def setup_inputs():

    _w = (lambda a: (lambda t: t.to(torch.bfloat16) if t.is_floating_point() else t)(torch.as_tensor(a)))
    def _A_setup():
        B, Sq, D = 1, 1, 512
        Hq, Hkv, Sk, Dh = 32, 8, 65536, 128
        assert Hq % Hkv == 0, (Hq, Hkv)
        return {
            "x": _w((lambda *s: torch.randn(*s, dtype=torch.bfloat16) * 0.05)(B, Sq, D)),
            "k_cache": _w((lambda *s: torch.randn(*s, dtype=torch.bfloat16) * 6.4)(B, Hkv, Sk, Dh)),
            "v_cache": _w((lambda *s: torch.randn(*s, dtype=torch.bfloat16) * 0.4)(B, Hkv, Sk, Dh)),
            "wq": _w((lambda *s: torch.randn(*s, dtype=torch.bfloat16) * 6.4)(D, Hq * Dh) * (D ** -0.5)),
            "wo": _w((lambda *s: torch.randn(*s, dtype=torch.bfloat16) * 0.4)(Hq * Dh, D) * ((Hq * Dh) ** -0.5)),
        }
    _A_in = _A_setup()

    def _B_setup():
        B, S, D, F = 1, 1, 512, 1792
        return {
            "x": _w((lambda *s: torch.randn(*s, dtype=torch.bfloat16) * 0.05)(B, S, D)),
            "w1": _w((lambda *s: torch.randn(*s, dtype=torch.bfloat16) * 12.8)(D, F) * (D ** -0.5)),
            "b1": _w((lambda *s: torch.randn(*s, dtype=torch.bfloat16) * 0.05)(F)),
            "w2": _w((lambda *s: torch.randn(*s, dtype=torch.bfloat16) * 0.05)(F, D) * (F ** -0.5)),
        }
    _B_in = _B_setup()

    return {
        "A_x": _A_in["x"],
        "A_k_cache": _A_in["k_cache"],
        "A_v_cache": _A_in["v_cache"],
        "A_wq": _A_in["wq"],
        "A_wo": _A_in["wo"],
        "B_x": _B_in["x"],
        "B_w1": _B_in["w1"],
        "B_b1": _B_in["b1"],
        "B_w2": _B_in["w2"],
        "gate_w": _w((lambda *s: torch.randn(*s, dtype=torch.bfloat16) * 0.05)(512) * 16.0),
    }

def reference(A_x, A_k_cache, A_v_cache, A_wq, A_wo, B_x, B_w1, B_b1, B_w2, gate_w):
    def _A_ref(x, k_cache, v_cache, wq, wo):
        B, Sq, D = x.shape
        Hq, Dh = 32, 128
        Hkv, Sk = k_cache.shape[1], k_cache.shape[2]
        W = min(4096, max(256, Sk // 4))
        rep = Hq // Hkv
        q = (lambda x, *d: x.permute(*d))((x @ wq).reshape(B, Sq, Hq, Dh), 0, 2, 1, 3)
        k = (lambda x, n, axis: torch.repeat_interleave(x, n, dim=axis))(k_cache[:, :, Sk - W:, :], rep, axis=1)
        v = (lambda x, n, axis: torch.repeat_interleave(x, n, dim=axis))(v_cache[:, :, Sk - W:, :], rep, axis=1)
        scores = torch.einsum("bhqd,bhkd->bhqk", q, k) * (Dh ** -0.5)
        p = _softmax(scores, axis=-1)
        o = torch.einsum("bhqk,bhkd->bhqd", p, v)
        return (lambda x, *d: x.permute(*d))(o, 0, 2, 1, 3).reshape(B, Sq, Hq * Dh) @ wo

    def _B_ref(x, w1, b1, w2):
        h = torch.einsum("bsd,df->bsf", x, w1) + b1
        sp = torch.log1p(torch.exp(-torch.abs(h))) + torch.where(h > 0, h, torch.zeros_like(h))
        act = h * torch.tanh(sp)
        return torch.einsum("bsf,fd->bsd", act, w2)

    x = A_x
    g = _sigmoid((x * gate_w).sum(-1, keepdims=True))
    a = _A_ref(x, A_k_cache, A_v_cache, A_wq, A_wo)
    b = _B_ref(x, B_w1, B_b1, B_w2)
    return g * a + (1 - g) * b
```

```python
KN = "gated_mix__sliding_block_cached__dense_activation_mish__decode"
HDR = """.amdgcn_target "amdgcn-amd-amdhsa--gfx950"
.text
.globl {k}
.p2align 8
.type {k},@function
{k}:
"""
FTR = """
.section .rodata,"a"
.p2align 6
.amdhsa_kernel {k}
  .amdhsa_next_free_vgpr {vgpr}
  .amdhsa_next_free_sgpr {sgpr}
  .amdhsa_accum_offset {acc}
  .amdhsa_group_segment_fixed_size 0
  .amdhsa_kernarg_size 104
  .amdhsa_user_sgpr_count 2
  .amdhsa_user_sgpr_kernarg_segment_ptr 1
  .amdhsa_system_sgpr_workgroup_id_x 1
.end_amdhsa_kernel
"""
class Asm:
    def __init__(self):
        self.L = []
    def __call__(self, s):
        for line in s.strip("\n").split("\n"):
            self.L.append("    " + line.strip() if not line.strip().endswith(":") else line.strip())
    def text(self):
        return "\n".join(self.L) + "\n"

def wrap(body, grid, block, lds, vgpr=256, sgpr=102, k=None):
    k = k or KN + "_kernel"
    acc = min(256, (vgpr + 3) // 4 * 4)
    return f"; @launch grid=({grid},1,1) block=({block},1,1) lds={lds}\n" + HDR.format(k=k) + body + FTR.format(k=k, vgpr=vgpr, sgpr=sgpr, acc=acc)
```

```python
import sys
from common import *

QREG, MLREG, OREG, FREG = 0x1000, 0x10000, 0x20000, 0x100000
L_WQ, L_W1, L_X0, L_X1, L_Q, L_O, L_M, L_L, L_ACT, L_G = 0, 0x4000, 0x8000, 0x8400, 0x8800, 0x8C00, 0xAC00, 0xAC40, 0xAC80, 0xAC90
LDS = 0xAD00
LOG2E = 0x3FB8AA3B
SCALE = 0x3DB504F3
LN2 = 0x3F317218

def gen(stamps=False, ldf="nt", stf="sc1", plf="sc1"):
    a = Asm()
    NS = 12
    def stamp(i):
        if stamps: a(f"s_memrealtime s[{64+2*i}:{65+2*i}]")
    if stamps:
        for i in range(NS): a(f"s_mov_b64 s[{64+2*i}:{65+2*i}], 0")
    stamp(0)
    a("""
    s_load_dwordx16 s[8:23], s[0:1], 0
    s_load_dwordx8 s[24:31], s[0:1], 64
    s_load_dwordx2 s[32:33], s[0:1], 96
    s_cmp_ge_u32 s2, 256
    s_cbranch_scc1 L_end
    s_and_b32 s3, s2, 7          ; g
    s_lshr_b32 s4, s2, 3         ; j
    v_lshrrev_b32 v1, 6, v0
    v_and_b32 v0, 63, v0         ; lane
    v_and_b32 v2, 15, v0         ; n
    v_readfirstlane_b32 s5, v1
    v_lshrrev_b32 v3, 4, v0      ; grp
    v_lshlrev_b32 v4, 4, v0      ; lane*16
    s_min_u32 s6, s4, 27
    s_mul_i32 s7, s3, 28
    s_add_u32 s6, s6, s7
    s_cmp_ge_u32 s5, 4
    s_waitcnt lgkmcnt(0)
    s_cbranch_scc1 L_aux
    """)
    stamp(1)
    a(f"""
    s_load_dword s34, s[32:33], 0       ; epoch
    s_lshl_b32 s36, s3, 24
    s_lshl_b32 s37, s4, 15
    s_add_u32 s36, s36, s37
    s_lshl_b32 s37, s5, 13
    s_add_u32 s36, s36, s37
    s_add_u32 s36, s36, {61440*256 + 4096}
    s_add_u32 s38, s12, s36
    s_addc_u32 s39, s13, 0              ; V base(+4096)
    s_add_u32 s36, s10, s36
    s_addc_u32 s37, s11, 0              ; K base(+4096)
    v_and_b32 v5, 3, v2
    v_lshlrev_b32 v5, 2, v5
    v_lshrrev_b32 v6, 2, v2
    v_add_u32 v5, v5, v6
    v_lshlrev_b32 v5, 8, v5
    v_lshl_add_u32 v5, v3, 4, v5        ; K voff
    """)
    KR, VR, WR = 16, 48, 80
    for T in range(2):
        for s in range(4):
            r = KR + (T*4+s)*4
            a(f"global_load_dwordx4 v[{r}:{r+3}], v5, s[36:37] offset:{T*4096 - 4096 + s*64} {ldf}")
    for t in range(8):
        r = VR + t*4
        a(f"global_load_dwordx4 v[{r}:{r+3}], v4, s[38:39] offset:{t*1024 - 4096} {ldf}")
    a(f"""
    s_lshl_b32 s40, s3, 19
    s_lshl_b32 s41, s4, 14
    s_add_u32 s40, s40, s41
    s_lshl_b32 s41, s5, 8
    s_add_u32 s40, s40, s41
    s_add_u32 s40, s16, s40
    s_addc_u32 s41, s17, 0
    s_lshl_b32 s42, s6, 13
    s_lshl_b32 s43, s5, 8
    s_add_u32 s42, s42, s43
    s_add_u32 s42, s24, s42
    s_addc_u32 s43, s25, 0              ; w2 base
    v_lshlrev_b32 v6, 4, v2             ; n*16
    v_lshl_add_u32 v7, v3, 11, v6
    v_lshl_add_u32 v6, v3, 12, v6
    """)
    for t in range(4):
        r = WR + t*4
        a(f"global_load_dwordx4 v[{r}:{r+3}], v6, s[40:41] offset:{t*1024} {ldf}")
    for t in range(2):
        r = WR + 16 + t*4
        a(f"global_load_dwordx4 v[{r}:{r+3}], v7, s[42:43] offset:{t*1024} {ldf}")
    stamp(2)
    a(f"""
    v_lshrrev_b32 v8, 2, v2
    v_lshlrev_b32 v8, 8, v8
    v_lshl_add_u32 v8, v3, 4, v8
    s_mov_b32 s44, 0x05040100
    s_mov_b32 s45, 0x07060302
    s_mov_b32 s46, {SCALE:#x}
    s_mov_b32 s47, {LOG2E:#x}
    s_waitcnt lgkmcnt(0)
    s_add_u32 s34, s34, 1               ; tag
    s_barrier
    """)
    stamp(3)
    QR = 104
    for s in range(4):
        a(f"ds_read_b128 v[{QR+4*s}:{QR+4*s+3}], v8 offset:{L_Q + s*64}")
    a("s_waitcnt vmcnt(14) lgkmcnt(0)")
    stamp(4)
    S = 120
    for s in range(4):
        for T in range(2):
            r = KR + (T*4+s)*4
            c = "0" if s == 0 else f"v[{S+4*T}:{S+4*T+3}]"
            a(f"v_mfma_f32_16x16x32_bf16 v[{S+4*T}:{S+4*T+3}], v[{r}:{r+3}], v[{QR+4*s}:{QR+4*s+3}], {c}")
    a("s_nop 7")
    for i in range(4):
        a(f"v_cvt_pk_bf16_f32 v{16+i}, v{S+2*i}, v{S+2*i+1}")
    for i in range(4):
        a(f"v_lshlrev_b32 v{S+2*i}, 16, v{16+i}")
        a(f"v_and_b32 v{S+2*i+1}, 0xffff0000, v{16+i}")
    for i in range(8):
        a(f"v_mul_f32 v{S+i}, s46, v{S+i}")
    for i in range(4):
        a(f"v_cvt_pk_bf16_f32 v{16+i}, v{S+2*i}, v{S+2*i+1}")
    for i in range(4):
        a(f"v_lshlrev_b32 v{S+2*i}, 16, v{16+i}")
        a(f"v_and_b32 v{S+2*i+1}, 0xffff0000, v{16+i}")
    a(f"""
    v_max3_f32 v20, v{S}, v{S+1}, v{S+2}
    v_max3_f32 v21, v{S+3}, v{S+4}, v{S+5}
    v_max3_f32 v20, v20, v{S+6}, v{S+7}
    v_max_f32 v20, v20, v21
    v_mov_b32 v21, v20
    s_nop 1
    v_permlane32_swap_b32 v20, v21
    v_max_f32 v20, v20, v21
    v_mov_b32 v21, v20
    s_nop 1
    v_permlane16_swap_b32 v20, v21
    v_max_f32 v20, v20, v21
    v_mul_f32 v20, s47, v20             ; m2
    """)
    for i in range(8):
        a(f"v_fma_f32 v{S+i}, v{S+i}, s47, -v20")
    for i in range(8):
        a(f"v_exp_f32 v{S+i}, v{S+i}")
    a("s_nop 0")
    PR = 24
    for i in range(4):
        a(f"v_cvt_pk_bf16_f32 v{PR+i}, v{S+2*i}, v{S+2*i+1}")
    a(f"""
    v_add_f32 v21, v{S}, v{S+1}
    v_add_f32 v22, v{S+2}, v{S+3}
    v_add_f32 v23, v{S+4}, v{S+5}
    v_add_f32 v28, v{S+6}, v{S+7}
    v_add_f32 v21, v21, v22
    v_add_f32 v23, v23, v28
    v_add_f32 v21, v21, v23
    v_mov_b32 v22, v21
    s_nop 1
    v_permlane32_swap_b32 v21, v22
    v_add_f32 v21, v21, v22
    v_mov_b32 v22, v21
    s_nop 1
    v_permlane16_swap_b32 v21, v22
    v_add_f32 v21, v21, v22             ; l
    v_lshrrev_b32 v22, 2, v2
    v_lshlrev_b32 v22, 4, v22
    s_lshl_b32 s48, s5, 2
    v_add_u32 v22, s48, v22
    ds_write_b32 v22, v20 offset:{L_M}
    ds_write_b32 v22, v21 offset:{L_L}
    """)
    stamp(5)
    a("s_waitcnt vmcnt(6)")
    stamp(6)
    BR = [104,108,112,116,120,124,32,36]
    for e in range(8):
        for d in range(4):
            sel = "s44" if e % 2 == 0 else "s45"
            a(f"v_perm_b32 v{BR[e]+d}, v{VR+(2*d+1)*4+(e>>1)}, v{VR+(2*d)*4+(e>>1)}, {sel}")
    a("s_nop 1")
    for e in range(8):
        a(f"v_mfma_f32_16x16x32_bf16 v[{VR+4*e}:{VR+4*e+3}], v[{PR}:{PR+3}], v[{BR[e]}:{BR[e]+3}], 0")
    a(f"""
    s_lshl_b32 s48, s5, 11
    v_lshlrev_b32 v22, 5, v0
    v_add_u32 v22, s48, v22             ; wave*2048 + l*32
    s_nop 4
    """)
    for e in range(8):
        a(f"v_mov_b32 v{32+e}, v{VR+4*e}")
    a(f"""
    ds_write_b128 v22, v[32:35] offset:{L_O}
    ds_write_b128 v22, v[36:39] offset:{L_O+16}
    v_and_b32 v23, 31, v0
    v_lshlrev_b32 v23, 4, v23
    s_lshl_b32 s48, s5, 9
    v_add_u32 v23, s48, v23
    s_lshl_b32 s49, s5, 4
    v_mov_b32 v28, s49                  ; head*16
    s_waitcnt lgkmcnt(0)
    s_barrier
    ds_read_b128 v[40:43], v28 offset:{L_M}
    ds_read_b128 v[44:47], v28 offset:{L_L}
    """)
    for w in range(4):
        a(f"ds_read_b128 v[{48+4*w}:{48+4*w+3}], v23 offset:{L_O + w*2048}")
    a(f"""
    v_lshlrev_b32 v29, 2, v3
    ds_read_b32 v30, v29 offset:{L_ACT}
    v_mov_b32 v29, 0
    ds_read_b64 v[64:65], v29 offset:{L_G}
    s_and_b32 s50, s34, 0xff
    s_bfe_u32 s51, s34, 0x80008
    s_bfe_u32 s52, s34, 0x80010
    s_lshr_b32 s53, s34, 24
    s_movk_i32 s54, 0xff
    v_lshrrev_b32 v31, 6, v23
    v_lshlrev_b32 v31, 11, v31
    v_and_b32 v29, 0x30, v23
    v_add_u32 v31, v31, v29
    s_lshl_b32 s48, s3, 16
    s_lshl_b32 s49, s4, 6
    s_add_u32 s48, s48, s49
    s_add_u32 s48, s48, {OREG}
    v_add_u32 v31, s48, v31
    s_waitcnt lgkmcnt(0)
    v_max3_f32 v20, v40, v41, v42
    v_max_f32 v20, v20, v43
    v_sub_f32 v40, v40, v20
    v_sub_f32 v41, v41, v20
    v_sub_f32 v42, v42, v20
    v_sub_f32 v43, v43, v20
    v_exp_f32 v40, v40
    v_exp_f32 v41, v41
    v_exp_f32 v42, v42
    v_exp_f32 v43, v43
    s_nop 0
    v_mul_f32 v21, v40, v44
    v_fmac_f32 v21, v41, v45
    v_fmac_f32 v21, v42, v46
    v_fmac_f32 v21, v43, v47
    """)
    for c in range(4):
        a(f"v_mul_f32 v{32+c}, v40, v{48+c}")
    for w in range(1, 4):
        for c in range(4):
            a(f"v_fmac_f32 v{32+c}, v{40+w}, v{48+4*w+c}")
    a("v_mov_b32 v29, s54")
    for c in range(4):
        a(f"v_bfi_b32 v{32+c}, v29, s{50+c}, v{32+c}")
    a(f"""
    v_mov_b32 v22, s34
    v_mov_b32 v23, s34
    s_lshl_b32 s48, s3, 2
    s_add_u32 s48, s48, s5
    s_lshl_b32 s48, s48, 9
    s_lshl_b32 s49, s4, 4
    s_add_u32 s48, s48, s49
    s_add_u32 s48, s48, {MLREG}
    v_mov_b32 v28, s48
    s_mov_b32 exec_hi, 0
    global_store_dwordx4 v31, v[32:35], s[32:33] {stf}
    s_mov_b64 exec, 1
    global_store_dwordx4 v28, v[20:23], s[32:33] {stf}
    s_mov_b64 exec, -1
    """)
    stamp(7)
    BW = [104,108,112,116,120,124,72,76]
    a("s_waitcnt vmcnt(2)")
    for e in range(8):
        sel = "s44" if e % 2 == 0 else "s45"
        for d in range(3):
            a(f"v_perm_b32 v{BW[e]+d}, v{WR+(2*d+1)*4+(e>>1)}, v{WR+(2*d)*4+(e>>1)}, {sel}")
        a(f"v_mov_b32 v{BW[e]+3}, 0")
    a(f"""
    s_lshl_b32 s48, s3, 5
    s_add_u32 s48, s48, s4
    s_lshl_b32 s48, s48, 11
    s_add_u32 s48, s48, {OREG}
    v_lshlrev_b32 v24, 6, v2
    v_lshl_add_u32 v24, v3, 4, v24
    v_add_u32 v24, s48, v24
    s_lshr_b32 s49, s4, 3
    s_lshl_b32 s48, s3, 2
    s_add_u32 s48, s48, s49
    s_lshl_b32 s48, s48, 9
    s_add_u32 s48, s48, {MLREG}
    v_lshlrev_b32 v25, 4, v2
    v_add_u32 v25, s48, v25
    v_and_b32 v26, 1, v0
    v_cmp_eq_u32 s[56:57], 1, v26
    s_mov_b32 s60, 20000
L_poll2:
    global_load_dwordx4 v[32:35], v24, s[32:33] {plf}
    global_load_dwordx4 v[36:39], v24, s[32:33] offset:1024 {plf}
    global_load_dwordx4 v[40:43], v25, s[32:33] {plf}
    global_load_dwordx4 v[44:47], v25, s[32:33] offset:256 {plf}
    s_waitcnt vmcnt(0)
    v_xor_b32 v48, s50, v32
    v_xor_b32 v49, s51, v33
    v_xor_b32 v50, s52, v34
    v_xor_b32 v51, s53, v35
    v_or3_b32 v48, v48, v49, v50
    v_xor_b32 v49, s50, v36
    v_xor_b32 v50, s51, v37
    v_or3_b32 v48, v48, v51, v49
    v_xor_b32 v49, s52, v38
    v_xor_b32 v51, s53, v39
    v_or3_b32 v48, v48, v50, v49
    v_or_b32 v48, v48, v51
    v_and_b32 v48, 0xff, v48
    v_xor_b32 v49, s34, v42
    v_xor_b32 v50, s34, v46
    v_or3_b32 v48, v48, v49, v50
    v_cmp_ne_u32 vcc, 0, v48
    s_cbranch_vccz L_ok2
    s_sub_u32 s60, s60, 1
    s_cbranch_scc0 L_poll2
L_ok2:
    """)
    stamp(8)
    a("""
    v_max_f32 v20, v40, v44
    s_nop 1
    v_max_f32_dpp v20, v20, v20 row_ror:1 row_mask:0xf bank_mask:0xf
    s_nop 1
    v_max_f32_dpp v20, v20, v20 row_ror:2 row_mask:0xf bank_mask:0xf
    s_nop 1
    v_max_f32_dpp v20, v20, v20 row_ror:4 row_mask:0xf bank_mask:0xf
    s_nop 1
    v_max_f32_dpp v20, v20, v20 row_ror:8 row_mask:0xf bank_mask:0xf
    v_sub_f32 v40, v40, v20
    v_sub_f32 v44, v44, v20
    v_exp_f32 v40, v40
    v_exp_f32 v44, v44
    s_nop 0
    v_mul_f32 v21, v40, v41
    v_mul_f32 v32, v40, v32
    v_mul_f32 v33, v40, v33
    v_mul_f32 v34, v40, v34
    v_mul_f32 v35, v40, v35
    v_fmac_f32 v21, v44, v45
    v_fmac_f32 v32, v44, v36
    v_fmac_f32 v33, v44, v37
    v_fmac_f32 v34, v44, v38
    v_fmac_f32 v35, v44, v39
    """)
    for sh in (1, 2, 4, 8):
        for r in (21, 32, 33, 34, 35):
            a(f"v_add_f32_dpp v{r}, v{r}, v{r} row_ror:{sh} row_mask:0xf bank_mask:0xf")
    a(f"""
    v_rcp_f32 v21, v21
    s_nop 0
    v_mul_f32 v32, v21, v32
    v_mul_f32 v33, v21, v33
    v_mul_f32 v34, v21, v34
    v_mul_f32 v35, v21, v35
    v_cvt_pk_bf16_f32 v28, v32, v33
    v_cvt_pk_bf16_f32 v29, v34, v35
    v_cndmask_b32 v28, v28, 0, s[56:57]
    v_cndmask_b32 v29, v29, 0, s[56:57]
    v_cndmask_b32 v30, 0, v30, s[56:57]
    v_mov_b32 v31, 0
    s_nop 1
    """)
    for e in range(8):
        a(f"v_mfma_f32_16x16x32_bf16 v[{32+4*e}:{32+4*e+3}], v[28:31], v[{BW[e]}:{BW[e]+3}], 0")
    a(f"""
    s_lshl_b32 s48, s5, 17
    s_lshl_b32 s49, s2, 4
    s_add_u32 s48, s48, s49
    s_add_u32 s48, s48, {FREG}
    v_lshlrev_b32 v24, 13, v2
    v_add_u32 v24, s48, v24
    v_add_u32 v25, 4096, v24
    v_mov_b32 v29, s54
    s_nop 1
    """)
    for e in range(8):
        a(f"v_mul_f32 v{16+e}, v64, v{32+4*e}")
    for e in range(8):
        a(f"v_fmac_f32 v{16+e}, v65, v{32+4*e+1}")
    for e in range(8):
        a(f"v_bfi_b32 v{16+e}, v29, s{50+(e&3)}, v{16+e}")
    a(f"""
    s_mov_b64 exec, 0xffff
    global_store_dwordx4 v24, v[16:19], s[32:33] {stf}
    global_store_dwordx4 v25, v[20:23], s[32:33] {stf}
    s_mov_b64 exec, -1
    """)
    stamp(9)
    a(f"""
    s_cmp_lg_u32 s5, 0
    s_cbranch_scc1 L_fin
    s_cmp_ge_u32 s2, 128
    s_cbranch_scc1 L_fin
    s_lshl_b32 s48, s2, 12
    s_add_u32 s48, s48, {FREG}
    v_add_u32 v24, s48, v4
    s_mov_b32 s60, 20000
L_poll3:
    global_load_dwordx4 v[32:35], v24, s[32:33] {plf}
    global_load_dwordx4 v[36:39], v24, s[32:33] offset:1024 {plf}
    global_load_dwordx4 v[40:43], v24, s[32:33] offset:2048 {plf}
    global_load_dwordx4 v[44:47], v24, s[32:33] offset:3072 {plf}
    v_mov_b32 v48, 0
    s_waitcnt vmcnt(0)
    """)
    for i in range(4):
        a(f"""
        v_xor_b32 v49, s50, v{32+4*i}
        v_xor_b32 v50, s51, v{33+4*i}
        v_or3_b32 v48, v48, v49, v50
        v_xor_b32 v49, s52, v{34+4*i}
        v_xor_b32 v50, s53, v{35+4*i}
        v_or3_b32 v48, v48, v49, v50
        """)
    a(f"""
    v_and_b32 v48, 0xff, v48
    v_cmp_ne_u32 vcc, 0, v48
    s_cbranch_vccz L_ok3
    s_sub_u32 s60, s60, 1
    s_cbranch_scc0 L_poll3
L_ok3:
    """)
    stamp(10)
    for c in range(4):
        a(f"v_add_f32 v{32+c}, v{32+c}, v{36+c}")
        a(f"v_add_f32 v{40+c}, v{40+c}, v{44+c}")
    for c in range(4):
        a(f"v_add_f32 v{32+c}, v{32+c}, v{40+c}")
    a(f"""
    s_nop 1
    v_permlane32_swap_b32 v32, v34
    v_permlane32_swap_b32 v33, v35
    v_add_f32 v32, v32, v34
    v_add_f32 v33, v33, v35
    s_nop 1
    v_permlane16_swap_b32 v32, v33
    v_add_f32 v32, v32, v33
    s_nop 1
    v_add_f32_dpp v32, v32, v32 row_ror:1 row_mask:0xf bank_mask:0xf
    s_nop 1
    v_add_f32_dpp v32, v32, v32 row_ror:2 row_mask:0xf bank_mask:0xf
    s_nop 1
    v_add_f32_dpp v32, v32, v32 row_ror:4 row_mask:0xf bank_mask:0xf
    s_nop 1
    v_add_f32_dpp v32, v32, v32 row_ror:8 row_mask:0xf bank_mask:0xf
    v_cvt_pk_bf16_f32 v32, v32, v32
    s_lshl_b32 s48, s2, 3
    v_lshlrev_b32 v24, 1, v3
    v_add_u32 v24, s48, v24
    s_mov_b32 s48, 0x00010001
    s_mov_b32 s49, 0x00010001
    s_mov_b64 exec, s[48:49]
    global_store_short v24, v32, s[28:29]
    s_cmp_lg_u32 s2, 0
    s_cbranch_scc1 L_fin
    s_mov_b64 exec, 1
    v_mov_b32 v24, 0
    v_mov_b32 v25, s34
    global_store_dword v24, v25, s[32:33]
    s_branch L_fin
    """)
    a(f"""
L_aux:
    s_setprio 3
    s_load_dword s34, s[32:33], 0       ; epoch
    v_lshrrev_b32 v5, 1, v0
    s_cmp_eq_u32 s5, 4
    s_cbranch_scc0 L_aux_m
    s_lshl_b32 s36, s3, 10
    s_lshl_b32 s37, s4, 5
    s_add_u32 s36, s36, s37
    s_add_u32 s36, s14, s36
    s_addc_u32 s37, s15, 0
    s_mov_b32 s38, {32*8192}
    v_lshlrev_b32 v5, 13, v5
    v_and_b32 v6, 1, v0
    v_lshl_add_u32 v5, v6, 4, v5
    s_mov_b32 s39, {L_WQ}
    s_mov_b32 s40, {L_X0}
    s_branch L_aux_ld
L_aux_m:
    s_lshl_b32 s36, s6, 4
    s_add_u32 s36, s20, s36
    s_addc_u32 s37, s21, 0
    s_mov_b32 s38, {32*3584}
    v_mul_u32_u24 v5, 3584, v5
    s_mov_b32 s39, {L_W1}
    s_mov_b32 s40, {L_X1}
L_aux_ld:
    s_mov_b32 m0, s40
    s_nop 0
    global_load_lds_dwordx4 v4, s[8:9]
    s_mov_b32 m0, s39
    """)
    for i in range(16):
        a(f"global_load_lds_dwordx4 v5, s[36:37] {ldf}" if i else f"s_nop 0\nglobal_load_lds_dwordx4 v5, s[36:37] {ldf}")
        if i < 15:
            a("s_add_u32 m0, m0, 1024\nv_add_u32 v5, s38, v5")
    stamp(2)
    a(f"""
    v_lshlrev_b32 v6, 4, v3
    v_add_u32 v6, s40, v6
    v_lshlrev_b32 v7, 3, v2
    v_lshl_add_u32 v7, v3, 8, v7
    v_add_u32 v7, s39, v7
    s_cmp_eq_u32 s5, 4
    s_cbranch_scc1 L_aux_go
    global_load_dwordx4 v[8:11], v4, s[26:27]
    global_load_dwordx4 v[12:15], v4, s[8:9]
    v_and_b32 v1, 7, v0
    v_lshlrev_b32 v1, 1, v1
    s_lshl_b32 s41, s6, 4
    v_add_u32 v5, s41, v1
    global_load_ushort v5, v5, s[22:23]
    s_barrier
L_aux_go:
    s_waitcnt vmcnt(0)
    """)
    stamp(3)
    XR, TR = 16, 64
    for half in range(2):
        for s in range(8):
            ss = half*8 + s
            a(f"ds_read_b128 v[{XR+4*s}:{XR+4*s+3}], v6 offset:{ss*64}")
            a(f"ds_read_b64_tr_b16 v[{TR+4*s}:{TR+4*s+1}], v7 offset:{ss*1024}")
            a(f"ds_read_b64_tr_b16 v[{TR+4*s+2}:{TR+4*s+3}], v7 offset:{ss*1024+128}")
        a("s_waitcnt lgkmcnt(0)")
        for s in range(8):
            c = "0" if (half == 0 and s == 0) else "v[48:51]"
            a(f"v_mfma_f32_16x16x32_bf16 v[48:51], v[{XR+4*s}:{XR+4*s+3}], v[{TR+4*s}:{TR+4*s+3}], {c}")
    a(f"""
    s_add_u32 s34, s34, 1
    s_nop 7
    v_cvt_pk_bf16_f32 v48, v48, v48
    s_cmp_eq_u32 s5, 4
    s_cbranch_scc0 L_mlp
    v_mov_b32 v49, s34
    s_lshl_b32 s36, s3, 12
    s_add_u32 s36, s36, {QREG}
    s_lshl_b32 s37, s4, 7
    s_add_u32 s37, s37, s36
    v_lshlrev_b32 v8, 3, v2
    v_add_u32 v8, s37, v8
    s_mov_b64 exec, 0xffff
    global_store_dwordx2 v8, v[48:49], s[32:33] {stf}
    s_mov_b64 exec, -1
    v_add_u32 v8, s36, v4
    v_lshlrev_b32 v9, 2, v0
    s_mov_b32 s44, 0x05040100
    """)
    stamp(4)
    a(f"""
    s_mov_b32 s60, 20000
L_poll1:
    global_load_dwordx4 v[16:19], v8, s[32:33] {plf}
    global_load_dwordx4 v[20:23], v8, s[32:33] offset:1024 {plf}
    global_load_dwordx4 v[24:27], v8, s[32:33] offset:2048 {plf}
    global_load_dwordx4 v[28:31], v8, s[32:33] offset:3072 {plf}
    v_mov_b32 v32, 0
    s_waitcnt vmcnt(0)
    """)
    for i in range(4):
        a(f"""
        v_xor_b32 v33, s34, v{17+4*i}
        v_xor_b32 v34, s34, v{19+4*i}
        v_or3_b32 v32, v32, v33, v34
        """)
    a("""
    v_cmp_ne_u32 vcc, 0, v32
    s_cbranch_vccz L_ok1
    s_sub_u32 s60, s60, 1
    s_cbranch_scc0 L_poll1
L_ok1:
    """)
    for i in range(4):
        a(f"v_perm_b32 v{16+4*i}, v{18+4*i}, v{16+4*i}, s44")
        a(f"ds_write_b32 v9, v{16+4*i} offset:{L_Q + i*256}")
    stamp(5)
    a(f"""
    s_waitcnt lgkmcnt(0)
    s_barrier
    s_branch L_fin
L_mlp:
    v_lshlrev_b32 v48, 16, v48
    v_lshlrev_b32 v5, 16, v5
    v_add_f32 v48, v48, v5
    v_cvt_pk_bf16_f32 v48, v48, v48
    v_lshlrev_b32 v48, 16, v48          ; h
    s_mov_b32 s47, {LOG2E:#x}
    s_mov_b32 s46, {LN2:#x}
    v_mul_f32 v49, s47, v48
    v_exp_f32 v49, -abs(v49)
    s_nop 0
    v_cvt_pk_bf16_f32 v49, v49, v49
    v_lshlrev_b32 v49, 16, v49
    v_add_f32 v50, 1.0, v49             ; u
    v_log_f32 v51, v50
    v_subrev_f32 v52, 1.0, v50          ; u-1
    v_rcp_f32 v53, v52
    v_mul_f32 v51, s46, v51
    v_mul_f32 v53, v49, v53
    v_mul_f32 v51, v51, v53
    v_cmp_eq_f32 vcc, 0, v52
    s_nop 1
    v_cndmask_b32 v51, v51, v49, vcc    ; log1p(e)
    v_cvt_pk_bf16_f32 v51, v51, v51
    v_lshlrev_b32 v51, 16, v51
    v_max_f32 v52, 0, v48
    v_add_f32 v51, v51, v52
    v_cvt_pk_bf16_f32 v51, v51, v51
    v_lshlrev_b32 v51, 16, v51          ; sp
    v_mul_f32 v52, s47, v51
    v_mul_f32 v52, -2.0, v52
    v_exp_f32 v52, v52
    s_nop 0
    v_add_f32 v53, 1.0, v52
    v_rcp_f32 v53, v53
    v_sub_f32 v52, 1.0, v52
    v_mul_f32 v52, v52, v53
    s_mov_b32 s45, 0x3a800000
    v_cmp_gt_f32 vcc, s45, v51
    s_nop 1
    v_cndmask_b32 v52, v52, v51, vcc    ; tanh(sp)
    v_cvt_pk_bf16_f32 v52, v52, v52
    v_lshlrev_b32 v52, 16, v52
    v_mul_f32 v52, v48, v52
    v_cvt_pk_bf16_f32 v52, v52, v52
    s_cmp_lt_u32 s4, 28
    s_cselect_b32 s45, -1, 0
    v_and_b32 v52, s45, v52
    ds_write_b16 v1, v52 offset:{L_ACT}
    ; gate
    v_mov_b32 v16, 0
    """)
    for i in range(4):
        a(f"""
        v_lshlrev_b32 v17, 16, v{8+i}
        v_lshlrev_b32 v18, 16, v{12+i}
        v_and_b32 v19, 0xffff0000, v{8+i}
        v_and_b32 v20, 0xffff0000, v{12+i}
        v_mul_f32 v17, v17, v18
        v_mul_f32 v19, v19, v20
        v_cvt_pk_bf16_f32 v17, v17, v19
        v_lshlrev_b32 v18, 16, v17
        v_and_b32 v19, 0xffff0000, v17
        v_add_f32 v16, v16, v18
        v_add_f32 v16, v16, v19
        """)
    a(f"""
    v_mov_b32 v17, v16
    s_nop 1
    v_permlane32_swap_b32 v16, v17
    v_add_f32 v16, v16, v17
    v_mov_b32 v17, v16
    s_nop 1
    v_permlane16_swap_b32 v16, v17
    v_add_f32 v16, v16, v17
    s_nop 1
    v_add_f32_dpp v16, v16, v16 row_ror:1 row_mask:0xf bank_mask:0xf
    s_nop 1
    v_add_f32_dpp v16, v16, v16 row_ror:2 row_mask:0xf bank_mask:0xf
    s_nop 1
    v_add_f32_dpp v16, v16, v16 row_ror:4 row_mask:0xf bank_mask:0xf
    s_nop 1
    v_add_f32_dpp v16, v16, v16 row_ror:8 row_mask:0xf bank_mask:0xf
    v_cvt_pk_bf16_f32 v16, v16, v16
    v_lshlrev_b32 v16, 16, v16
    v_mul_f32 v16, s47, v16
    v_exp_f32 v16, -v16
    s_nop 0
    v_add_f32 v16, 1.0, v16
    v_rcp_f32 v16, v16
    s_nop 0
    v_cvt_pk_bf16_f32 v16, v16, v16
    v_lshlrev_b32 v16, 16, v16          ; g
    v_sub_f32 v17, 1.0, v16
    v_cvt_pk_bf16_f32 v17, v17, v17
    v_lshlrev_b32 v17, 16, v17          ; 1-g
    v_mov_b32 v18, 0
    ds_write_b64 v18, v[16:17] offset:{L_G}
    """)
    stamp(5)
    a("""
    s_waitcnt lgkmcnt(0)
    s_barrier
L_fin:
    """)
    if stamps:
        stamp(11)
        a(f"""
        s_mul_i32 s48, s2, 6
        s_add_u32 s48, s48, s5
        s_mul_i32 s48, s48, {NS*8}
        s_add_u32 s48, s48, {256<<20}
        s_add_u32 s32, s32, s48
        s_addc_u32 s33, s33, 0
        s_mov_b64 exec, 1
        v_mov_b32 v9, 0
        s_waitcnt lgkmcnt(0)
        """)
        for i in range(NS):
            a(f"v_mov_b32 v10, s{64+2*i}\nv_mov_b32 v11, s{65+2*i}\nglobal_store_dwordx2 v9, v[10:11], s[32:33] offset:{i*8}\ns_nop 1")
    a("L_end:\ns_endpgm")
    return wrap(a.text(), 256, 384, LDS, vgpr=128, sgpr=96)

if __name__ == "__main__":
    open("v1.s", "w").write(gen())
    open("v1_st.s", "w").write(gen(stamps=True))
    open("v1_plain.s", "w").write(gen(ldf=""))
```
